```python
import torch

def _softmax(x, axis=-1):
    return torch.softmax(x, dim=axis)

def _gelu(x):
    return torch.nn.functional.gelu(x, approximate='tanh')

def _silu(x):
    return torch.nn.functional.silu(x)

def _sigmoid(x):
    return torch.sigmoid(x)

def _layernorm(x, axis=-1, eps=1e-05):
    m = x.mean(dim=axis, keepdim=True)
    v = x.var(dim=axis, keepdim=True, unbiased=False)
    return (x - m) / torch.sqrt(v + eps)

def _scatter_add(tgt, idx, src, axis=0):
    return tgt.clone().index_add_(axis, idx, src)

def _segment_sum(src, seg, n):
    out = torch.zeros((n,) + src.shape[1:], dtype=src.dtype)
    return out.index_add_(0, seg, src)

def _pad(x, pw):
    flat = tuple((v for pair in reversed(pw) for v in pair))
    return torch.nn.functional.pad(x, flat)
kernel_name = 'sequential_preLN__sliding_block__mixer_gmlp__prompt'

def setup_inputs():

    _w = lambda a: (lambda t: t.to(torch.bfloat16) if t.is_floating_point() else t)(torch.as_tensor(a))

    def _A_setup():
        B, S, D = (1, 2048, 512)
        return {'x': _w((lambda *s: torch.randn(*s, dtype=torch.bfloat16) * 0.05)(B, S, D)), 'wqkv': _w((lambda *s: torch.randn(*s, dtype=torch.bfloat16) * 0.05)(D, 3 * D)), 'wo': _w((lambda *s: torch.randn(*s, dtype=torch.bfloat16) * 0.05)(D, D))}
    _A_in = _A_setup()

    def _B_setup():
        B, S, D, F = (1, 2048, 512, 1792)
        Fh = F // 2
        return {'x': _w((lambda *s: torch.randn(*s, dtype=torch.bfloat16) * 0.05)(B, S, D)), 'w_in': _w((lambda *s: torch.randn(*s, dtype=torch.bfloat16) * 0.4)(D, 2 * Fh)), 'w_sp': _w(0.01 * (lambda *s: torch.randn(*s, dtype=torch.bfloat16) * 0.4)(S, S)), 'b_sp': _w(1.0 + 0.01 * (lambda *s: torch.randn(*s, dtype=torch.bfloat16) * 0.05)(S)), 'w_out': _w((lambda *s: torch.randn(*s, dtype=torch.bfloat16) * 0.05)(Fh, D))}
    _B_in = _B_setup()
    return {'A_x': _A_in['x'], 'A_wqkv': _A_in['wqkv'], 'A_wo': _A_in['wo'], 'B_x': _B_in['x'], 'B_w_in': _B_in['w_in'], 'B_w_sp': _B_in['w_sp'], 'B_b_sp': _B_in['b_sp'], 'B_w_out': _B_in['w_out']}

def reference(A_x, A_wqkv, A_wo, B_x, B_w_in, B_w_sp, B_b_sp, B_w_out):

    def _A_ref(x, wqkv, wo):
        B, S, D = x.shape
        H = 32
        Dh = D // H
        W = 256
        qkv = (lambda x, *d: x.permute(*d))((x @ wqkv).reshape(B, S, 3, H, Dh), 2, 0, 3, 1, 4)
        q, k, v = (qkv[0], qkv[1], qkv[2])
        scores = torch.einsum('bhqd,bhkd->bhqk', q, k) * Dh ** (-0.5)
        idx = torch.arange(S)
        mask = (idx[:, None] - idx[None, :] >= 0) & (idx[:, None] - idx[None, :] < W)
        scores = torch.where(mask[None, None], scores, -1000000000.0)
        p = _softmax(scores, axis=-1)
        o = torch.einsum('bhqk,bhkd->bhqd', p, v)
        return (lambda x, *d: x.permute(*d))(o, 0, 2, 1, 3).reshape(B, S, D) @ wo

    def _B_ref(x, w_in, w_sp, b_sp, w_out):
        B, S, D = x.shape
        F = w_in.shape[-1]
        Fh = F // 2
        z = _gelu(torch.einsum('bsd,df->bsf', x, w_in))
        z1 = z[..., :Fh].clone()
        z2 = _layernorm(z[..., Fh:], axis=-1)
        g = torch.einsum('ts,bsf->btf', w_sp, z2) + b_sp[None, :, None]
        return torch.einsum('bsf,fd->bsd', z1 * g, w_out)
    x = A_x
    h = x + _A_ref(_layernorm(x, axis=-1), A_wqkv, A_wo)
    h2 = h + _B_ref(_layernorm(h, axis=-1), B_w_in, B_w_sp, B_b_sp, B_w_out)
    return h2
```

```python
import re

TRANS = ('v_exp_f32','v_log_f32','v_rcp_f32','v_rsq_f32','v_sqrt_f32','v_sin_f32','v_cos_f32')

def _regs(tok):
    out=set()
    tok=tok.strip()
    m=re.fullmatch(r'-?\|?(?:abs\()?([vsa])\[(\d+):(\d+)\]\)?\|?',tok)
    if m:
        for i in range(int(m.group(2)),int(m.group(3))+1): out.add((m.group(1),i))
        return out
    m=re.fullmatch(r'-?\|?(?:abs\()?([vsa])(\d+)\)?\|?',tok)
    if m:
        out.add((m.group(1),int(m.group(2)))); return out
    if tok=='vcc': out.update({('s',106),('s',107)})
    return out

class Emitter:
    def __init__(self):
        self.lines=[]
        self.hist=[]
    def raw(self,s):
        self.lines.append(s)
    def comment(self,s): self.lines.append('    ; '+s)
    def label(self,l):
        self.lines.append(l+':')
        self._flush()
    def _flush(self):
        self.hist.append(dict(kind='barrierlike',dst=set(),src=set(),passes=0))
    def __call__(self,ins,*ops,**kw):
        mods=kw.get('mods','')
        ops=[str(o) for o in ops]
        text='    '+ins+' '+', '.join(ops)+((' '+mods) if mods else '')
        kind='other'; dst=set(); src=set(); passes=0
        if ins.startswith('v_mfma'):
            kind='mfma'
            dst=_regs(ops[0]); A=_regs(ops[1]); B=_regs(ops[2]); C=_regs(ops[3])
            src=A|B; passes=8 if '32x32' in ins else 4
            srcC=C
        elif ins.startswith('v_'):
            kind='trans' if ins.replace('_e32','').replace('_e64','') in TRANS else 'valu'
            if ins.startswith('v_cmp'):
                dst=_regs(ops[0]);
                for o in ops[1:]: src|=_regs(o)
            elif ins.startswith('v_permlane') and 'swap' in ins:
                kind='permlane'
                dst=_regs(ops[0])|_regs(ops[1]); src=set(dst)
            else:
                dst=_regs(ops[0])
                rest=ops[1:]
                if ins.startswith(('v_add_co','v_addc_co','v_sub_co','v_div_scale')):
                    dst|=_regs(ops[1]); rest=ops[2:]
                for o in rest: src|=_regs(o)
                if ins.startswith(('v_fmac','v_pk_fmac','v_dot2c','v_mac')): src|=dst
                if 'dpp' in ins or 'quad_perm' in mods or 'row_' in mods: kind='dpp'
                if ins.startswith('v_cndmask') and len(ops)==4: pass
        elif ins.startswith(('buffer_store','global_store','ds_write','buffer_atomic','global_atomic')):
            kind='memst'
            for o in ops: src|=_regs(o)
        elif ins.startswith(('buffer_load','global_load','ds_read','ds_bpermute','ds_swizzle','ds_permute')):
            kind='memld'
            dst=_regs(ops[0])
            for o in ops[1:]: src|=_regs(o)
        elif ins.startswith('s_'):
            kind='salu'
            if ins.startswith(('s_waitcnt','s_barrier','s_nop','s_branch','s_cbranch','s_endpgm','s_setprio')):
                pass
            elif ins.startswith('s_cmp'):
                for o in ops: src|=_regs(o)
            else:
                dst=_regs(ops[0])
                for o in ops[1:]: src|=_regs(o)
        need=0
        n=len(self.hist)
        for back,h in enumerate(reversed(self.hist[-24:])):
            dist=back
            req=0
            pk=h['kind']; pd=h['dst']
            vsrc={r for r in src if r[0] in 'va'}
            if pk=='trans' and kind in('valu','dpp','permlane','mfma','memst','memld') and (pd&src): req=max(req,1)
            if pk in('valu','trans','dpp','permlane'):
                if kind=='mfma' and pd&(src|srcC): req=max(req,2)
                if kind in('permlane','dpp') and pd&src: req=max(req,2)
                sd={r for r in pd if r[0]=='s'}
                if sd:
                    if kind in('memst','memld') and sd&src: req=max(req,5)
                    if kind in('valu','trans','dpp','permlane','mfma') and sd&src: req=max(req,2)
                    if ins.startswith('v_cndmask') and len(ops)==3+0 : pass
                if ins.startswith(('v_readfirstlane','v_readlane')) and pd&src: req=max(req,1)
                if ('s',106) in pd and ins.startswith('v_cndmask') and ops[-1]=='vcc': req=max(req,2)
            if pk=='mfma':
                P=h['passes']
                if kind=='mfma':
                    if pd&src: req=max(req,8 if P==4 else 12)
                    elif pd&srcC and pd!=srcC: req=max(req,6 if P==4 else 10)
                    elif pd&dst and pd!=dst: req=max(req,8 if P==4 else 12)
                elif kind in('valu','trans','dpp','permlane','memst','memld'):
                    if pd&(src|dst): req=max(req,8 if P==4 else 12)
                if kind in('valu','trans','dpp','permlane') and h['srcC']&dst and not (pd&dst): req=max(req,3 if P==4 else 7)
            if pk=='memst' and h.get('wide') and kind in('valu','trans','dpp','permlane','memld') and h['src']&dst: req=max(req,2)
            if pk=='salu_m0' and 'lds' in mods: req=max(req,1)
            need=max(need,req-dist)
        if need>0:
            while need>0:
                k=min(need,16)
                self.lines.append('    s_nop %d'%(k-1))
                for _ in range(k): self.hist.append(dict(kind='nop',dst=set(),src=set(),passes=0))
                need-=k
        self.lines.append(text)
        rec=dict(kind=kind,dst=dst,src=src,passes=passes)
        if kind=='mfma': rec['srcC']=srcC
        if kind=='memst' and ('x4' in ins or 'x3' in ins): rec['wide']=True
        self.hist.append(rec)
        if ins.startswith(('s_branch','s_cbranch')): pass
    def text(self): return '\n'.join(self.lines)+'\n'

def v(i,n=1):
    return 'v%d'%i if n==1 else 'v[%d:%d]'%(i,i+n-1)
def s(i,n=1):
    return 's%d'%i if n==1 else 's[%d:%d]'%(i,i+n-1)
```

```python
import sys
from emit import Emitter, v, s

S=2048; D=512
WS_QK=0; WS_VT=4<<20; WS_O=6<<20; WS_H=8<<20; WS_Z1=10<<20; WS_Z2=14<<20; WS_Z2T=18<<20; WS_U=22<<20
KA=dict(x=0,wqkv=8,wo=16,bx=24,w_in=32,w_sp=40,b_sp=48,w_out=56,out=64,dbg=72,ws=80)

def srd(e,R,lo,hi,size,off=0):
    if off:
        e('s_add_u32',s(R),s(lo),hex(off))
        e('s_addc_u32',s(R+1),s(hi),0)
        e('s_and_b32',s(R+1),s(R+1),'0xffff')
    else:
        e('s_mov_b32',s(R),s(lo))
        e('s_and_b32',s(R+1),s(hi),'0xffff')
    e('s_mov_b32',s(R+2),hex(size))
    e('s_mov_b32',s(R+3),'0x00020000')

def magic(div,maxq):
    for sh in range(16,24):
        m=(1<<sh)//div+1
        if m*maxq<(1<<32) and m<(1<<24) and all((q*m)>>sh==q//div for q in range(maxq)): return m,sh
    raise Exception('no magic')

def bf16r(e,dst,src,tmp=None):
    e('v_cvt_pk_bf16_f32',dst,src,src)
    e('v_lshlrev_b32',dst,16,dst)

def header(e,name):
    e.raw('.p2align 8'); e.raw('.globl %s'%name); e.raw('.type %s,@function'%name); e.raw('%s:'%name); e.hist=[]

def desc(name,nv,ns=102):
    acc=(nv+3)//4*4
    return '''.amdhsa_kernel %s
  .amdhsa_next_free_vgpr %d
  .amdhsa_next_free_sgpr %d
  .amdhsa_accum_offset %d
  .amdhsa_group_segment_fixed_size 0
  .amdhsa_kernarg_size 88
  .amdhsa_user_sgpr_count 2
  .amdhsa_user_sgpr_kernarg_segment_ptr 1
  .amdhsa_system_sgpr_workgroup_id_x 1
.end_amdhsa_kernel
'''%(name,nv,ns,acc)

def lngemm(e,name,mode):
    if mode=='qkv': N=1536; BN=192
    else: N=1792; BN=224
    NT=BN//32; CPR=BN//8; NC=64*CPR//256; SB=BN*2+32
    assert (SB//32)%2==1
    BUF=64*SB; LDS_B=65536
    header(e,name)
    e('s_cmp_ge_u32',s(2),256); e('s_cbranch_scc1',name+'_end')
    e('s_load_dwordx2',s(4,2),s(0,2),KA['x'])
    e('s_load_dwordx2',s(6,2),s(0,2),KA['wqkv'] if mode=='qkv' else KA['w_in'])
    e('s_load_dwordx2',s(8,2),s(0,2),KA['ws'])
    e('s_lshr_b32',s(28),s(2),3); e('s_lshl_b32',s(28),s(28),6)
    e('s_and_b32',s(29),s(2),7); e('s_mul_i32',s(29),s(29),BN)
    e('v_and_b32',v(1),63,v(0))
    e('v_lshrrev_b32',v(2),6,v(0))
    e('v_readfirstlane_b32',s(30),v(2))
    e('s_waitcnt','lgkmcnt(0)')
    if mode=='qkv':
        srd(e,12,4,5,S*D*2)
        srd(e,20,8,9,S*1024*2,WS_QK); srd(e,24,8,9,512*S*2,WS_VT)
    else:
        srd(e,12,8,9,S*D*2,WS_H)
        srd(e,20,8,9,S*896*2,WS_Z1); srd(e,24,8,9,S*896*2,WS_Z2)
    srd(e,16,6,7,512*N*2)
    GO=8; LO=16
    m,sh=magic(CPR,256*NC)
    e('s_mov_b32',s(32),m)
    e('s_lshl_b32',s(33),s(29),1)
    for i in range(NC):
        e('v_add_u32',v(3),256*i,v(0))
        e('v_mul_u32_u24',v(4),s(32),v(3)); e('v_lshrrev_b32',v(4),sh,v(4))
        e('v_mul_u32_u24',v(5),CPR,v(4)); e('v_sub_u32',v(5),v(3),v(5))
        e('v_lshlrev_b32',v(5),4,v(5))
        e('s_mov_b32',s(34),N*2)
        e('v_mul_u32_u24',v(GO+i),s(34),v(4)); e('v_add3_u32',v(GO+i),v(GO+i),v(5),s(33))
        e('v_bfe_u32',v(6),v(4),2,1); e('v_bfe_u32',v(7),v(4),3,1)
        e('v_and_b32',v(4),'0xfffffff3',v(4)); e('v_lshl_or_b32',v(4),v(6),3,v(4)); e('v_lshl_or_b32',v(4),v(7),2,v(4))
        e('s_mov_b32',s(34),SB)
        e('v_mul_u32_u24',v(LO+i),s(34),v(4)); e('v_add_u32',v(LO+i),v(LO+i),v(5))
        e('v_add_u32',v(LO+i),LDS_B,v(LO+i))
    BD=[184,212]
    STG=64*N*2
    def loadB(set_,stage):
        e('s_mov_b32',s(35),stage*STG)
        for i in range(NC):
            e('buffer_load_dwordx4',v(BD[set_]+4*i,4),v(GO+i),s(16,4),s(35),mods='offen')
    def writeB(set_,buf):
        for i in range(NC):
            e('ds_write_b128',v(LO+i),v(BD[set_]+4*i,4),mods='offset:%d'%(buf*BUF))
    loadB(0,0); loadB(1,1)
    X=64
    e('v_lshrrev_b32',v(3),2,v(1)); e('v_lshl_add_u32',v(3),v(2),4,v(3))
    e('v_and_b32',v(4),3,v(1))
    e('v_add_u32',v(5),s(28),v(3)); e('v_lshlrev_b32',v(5),10,v(5)); e('v_lshl_add_u32',v(5),v(4),4,v(5))
    for i in range(16):
        e('buffer_load_dwordx4',v(X+4*i,4),v(5),s(12,4),0,mods='offen offset:%d'%(64*i))
    e('s_mov_b32',s(36),'0x3f803f80')
    for r in (24,25,26,27): e('v_mov_b32',v(r),0)
    e('s_waitcnt','vmcnt(0)')
    for i in range(64):
        e('v_lshlrev_b32',v(28),16,v(X+i)); e('v_and_b32',v(29),'0xffff0000',v(X+i))
        e('v_add_f32',v(24),v(24),v(28)); e('v_add_f32',v(25),v(25),v(29))
        e('v_fma_f32',v(26),v(28),v(28),v(26)); e('v_fma_f32',v(27),v(29),v(29),v(27))
    e('v_add_f32',v(24),v(24),v(25)); e('v_add_f32',v(26),v(26),v(27))
    for qp in ('[1,0,3,2]','[2,3,0,1]'):
        e('v_add_f32_dpp',v(24),v(24),v(24),mods='quad_perm:%s row_mask:0xf bank_mask:0xf'%qp)
        e('v_add_f32_dpp',v(26),v(26),v(26),mods='quad_perm:%s row_mask:0xf bank_mask:0xf'%qp)
    e('v_mul_f32',v(24),'0x3b000000',v(24))
    e('v_mul_f32',v(26),'0x3b000000',v(26))
    e('v_fma_f32',v(26),'-'+v(24),v(24),v(26)); e('v_max_f32',v(26),0,v(26))
    bf16r(e,v(24),v(24)); bf16r(e,v(26),v(26))
    e('v_add_f32',v(26),'0x3727c5ac',v(26)); bf16r(e,v(26),v(26))
    e('v_sqrt_f32',v(26),v(26)); bf16r(e,v(26),v(26))
    e('v_rcp_f32',v(26),v(26))
    e('v_mul_f32',v(24),v(24),v(26)); e('v_sub_f32',v(24),0,v(24))
    e('v_and_b32',v(6),15,v(3)); e('v_lshlrev_b32',v(7),10,v(3))
    for j in range(4):
        e('v_add_u32',v(28+j),4*j,v(4)); e('v_xor_b32',v(28+j),v(28+j),v(6)); e('v_lshl_add_u32',v(28+j),v(28+j),4,v(7))
    for i in range(16):
        for d in range(4):
            r=X+4*i+d
            e('v_lshlrev_b32',v(32),16,v(r)); e('v_and_b32',v(33),'0xffff0000',v(r))
            e('v_fma_f32',v(32),v(32),v(26),v(24)); e('v_fma_f32',v(33),v(33),v(26),v(24))
            e('v_cvt_pk_bf16_f32',v(r),v(32),v(33))
        e('ds_write_b128',v(28+(i&3)),v(X+4*i,4),mods='offset:%d'%((i>>2)*256))
    AA=36
    e('v_lshrrev_b32',v(3),4,v(1)); e('v_and_b32',v(4),15,v(1))
    e('s_lshr_b32',s(37),s(30),1); e('s_lshl_b32',s(37),s(37),15)
    e('v_lshlrev_b32',v(5),10,v(4)); e('v_add_u32',v(5),s(37),v(5))
    for j in range(4):
        e('v_add_u32',v(AA+j),4*j,v(3)); e('v_xor_b32',v(AA+j),v(AA+j),v(4)); e('v_lshl_add_u32',v(AA+j),v(AA+j),4,v(5))
    BA=40
    e('v_lshrrev_b32',v(5),1,v(3)); e('v_lshlrev_b32',v(5),4,v(5)); e('v_and_b32',v(6),1,v(3)); e('v_lshl_add_u32',v(5),v(6),2,v(5))
    e('v_lshrrev_b32',v(6),2,v(4)); e('v_add_u32',v(5),v(5),v(6))
    e('s_mov_b32',s(34),SB); e('v_mul_u32_u24',v(5),s(34),v(5))
    e('v_and_b32',v(6),3,v(4)); e('v_lshl_add_u32',v(5),v(6),3,v(5))
    e('s_and_b32',s(38),s(30),1); e('s_mul_i32',s(38),s(38),BN)
    e('s_add_u32',s(38),s(38),LDS_B)
    e('v_add_u32',v(BA),s(38),v(5))
    ACC=128; AF=64; BF=72
    def mainloop(flags):
        for r in range(2*NT*4): e('v_mov_b32',v(ACC+r),0)
        for st in range(8):
            buf=st&1
            for kk in range(2):
                for ti in range(2):
                    e('ds_read_b128',v(AF+4*ti,4),v(AA+(2*(st&1)+kk)),mods='offset:%d'%(ti*16384+(st>>1)*256))
                for nj in range(NT):
                    o=buf*BUF+kk*32*SB+nj*32
                    e('ds_read_b64_tr_b16',v(BF+4*nj,2),v(BA),mods='offset:%d'%o)
                    e('ds_read_b64_tr_b16',v(BF+4*nj+2,2),v(BA),mods='offset:%d'%(o+8*SB))
                for nj in range(NT):
                    e('s_waitcnt','lgkmcnt(%d)'%(2*(NT-1-nj)))
                    for ti in range(2):
                        a=v(ACC+(ti*NT+nj)*4,4)
                        if flags[nj]: e('v_mfma_f32_16x16x32_bf16',a,v(AF+4*ti,4),v(BF+4*nj,4),a)
                        else: e('v_mfma_f32_16x16x32_bf16',a,v(BF+4*nj,4),v(AF+4*ti,4),a)
            if st<7:
                e('s_waitcnt','vmcnt(%d)'%(NC if st<6 else 0))
                writeB((st+1)&1,(st+1)&1)
                if st+3<8: loadB((st+1)&1,st+3)
                e('s_waitcnt','lgkmcnt(0)')
                e('s_barrier')
    def epilogue(flags):
        e('s_nop',7)
        e('s_lshr_b32',s(37),s(30),1); e('s_lshl_b32',s(37),s(37),5); e('s_add_u32',s(37),s(37),s(28))
        e('s_and_b32',s(38),s(30),1); e('s_mul_i32',s(38),s(38),BN//2); e('s_add_u32',s(38),s(38),s(29))
        LD=1024 if mode=='qkv' else 896
        e('v_add_u32',v(5),s(37),v(4)); e('s_mov_b32',s(34),LD*2); e('v_mul_u32_u24',v(5),s(34),v(5))
        e('v_lshl_add_u32',v(6),v(3),2,s(38))
        if mode=='win':
            e('s_cmp_ge_u32',s(29),896); e('s_cselect_b32',s(39),896,0)
            e('v_subrev_u32',v(7),s(39),v(6)); e('v_lshl_add_u32',v(5),v(7),1,v(5))
        else:
            e('v_lshl_add_u32',v(5),v(6),1,v(5))
            e('v_add_u32',v(7),s(38),v(4)); e('v_subrev_u32',v(7),1024,v(7)); e('v_lshlrev_b32',v(7),12,v(7))
            e('v_lshl_add_u32',v(8),v(3),2,s(37)); e('v_lshl_add_u32',v(7),v(8),1,v(7))
        for ti in range(2):
            for nj in range(NT):
                a=ACC+(ti*NT+nj)*4
                if mode=='win':
                    for r in range(4):
                        x=v(a+r)
                        bf16r(e,x,x)
                        e('v_mul_f32',v(32),x,x); e('v_mul_f32',v(32),x,v(32))
                        e('v_fma_f32',v(32),v(32),s(40),x)
                        e('v_mul_f32',v(32),s(41),v(32))
                        e('v_exp_f32',v(32),v(32)); e('v_add_f32',v(32),1.0,v(32)); e('v_rcp_f32',v(32),v(32))
                        e('v_mul_f32',x,x,v(32))
                e('v_cvt_pk_bf16_f32',v(a),v(a),v(a+1)); e('v_cvt_pk_bf16_f32',v(a+1),v(a+2),v(a+3))
                if flags[nj]:
                    e('buffer_store_dwordx2',v(a,2),v(7),s(24,4),0,mods='offen offset:%d'%(ti*32))
                else:
                    e('buffer_store_dwordx2',v(a,2),v(5),s(20,4),s(42+ti),mods='offen offset:%d'%(nj*32))
    e('s_waitcnt','vmcnt(%d)'%NC)
    writeB(0,0); loadB(0,2)
    e('s_waitcnt','lgkmcnt(0)'); e('s_barrier')
    LD=1024 if mode=='qkv' else 896
    e('s_mov_b32',s(42),0); e('s_mov_b32',s(43),16*LD*2)
    if mode=='win':
        e('s_mov_b32',s(40),'0x3d372713'); e('s_mov_b32',s(41),'0xc0135761')
        mainloop([False]*NT)
        e('s_cmp_ge_u32',s(29),896); e('s_cbranch_scc0',name+'_z1')
        for i in range(4): e('s_mov_b32',s(20+i),s(24+i))
        e.label(name+'_z1')
        epilogue([False]*NT)
    else:
        e('s_and_b32',s(38),s(30),1); e('s_mul_i32',s(38),s(38),BN//2); e('s_add_u32',s(38),s(38),s(29))
        e('s_cmp_ge_u32',s(38),1024); e('s_cbranch_scc1',name+'_v')
        e('s_cmp_eq_u32',s(38),960); e('s_cbranch_scc1',name+'_mx')
        for lab,fl in ((None,[False]*6),('_v',[True]*6),('_mx',[False]*4+[True]*2)):
            if lab: e.label(name+lab)
            mainloop(fl)
            qkv_epi(e,fl,NT,ACC)
            e('s_endpgm')
    e.label(name+'_end')
    e('s_endpgm')

def qkv_epi(e,flags,NT,ACC):
    e('s_nop',7)
    e('s_lshr_b32',s(37),s(30),1); e('s_lshl_b32',s(37),s(37),5); e('s_add_u32',s(37),s(37),s(28))
    e('s_and_b32',s(38),s(30),1); e('s_mul_i32',s(38),s(38),96); e('s_add_u32',s(38),s(38),s(29))
    e('v_add_u32',v(5),s(37),v(4)); e('v_lshlrev_b32',v(5),11,v(5))
    e('v_lshl_add_u32',v(6),v(3),2,s(38)); e('v_lshl_add_u32',v(5),v(6),1,v(5))
    e('v_add_u32',v(7),s(38),v(4)); e('v_subrev_u32',v(7),1024,v(7)); e('v_lshlrev_b32',v(7),12,v(7))
    e('v_lshl_add_u32',v(8),v(3),2,s(37)); e('v_lshl_add_u32',v(7),v(8),1,v(7))
    for ti in range(2):
        for nj in range(NT):
            a=ACC+(ti*NT+nj)*4
            e('v_cvt_pk_bf16_f32',v(a),v(a),v(a+1)); e('v_cvt_pk_bf16_f32',v(a+1),v(a+2),v(a+3))
            if flags[nj]:
                e('v_add_u32',v(9),nj*16*4096,v(7))
                e('buffer_store_dwordx2',v(a,2),v(9),s(24,4),0,mods='offen offset:%d'%(ti*32))
            else:
                e('buffer_store_dwordx2',v(a,2),v(5),s(20,4),s(42+ti),mods='offen offset:%d'%(nj*32))

def gemm2(e,name,mode):
    if mode=='wo':   K=512;  BN=64;  NTILES=8;  kn=True;  lda=512;  ldb=512
    if mode=='wout': K=896;  BN=64;  NTILES=8;  kn=True;  lda=896;  ldb=512
    if mode=='wsp':  K=2048; BN=128; NTILES=7;  kn=False; lda=2048; ldb=2048
    NST=K//64; NT=BN//32; nwg=32*NTILES
    NCB=2 if kn else BN*8//256
    SB=160
    ABUF=8192; BBUF=(64*SB if kn else BN*128); BUF=ABUF+BBUF
    header(e,name)
    e('s_cmp_ge_u32',s(2),nwg); e('s_cbranch_scc1',name+'_end')
    e('s_load_dwordx2',s(8,2),s(0,2),KA['ws'])
    e('s_load_dwordx2',s(6,2),s(0,2),{'wo':KA['wo'],'wout':KA['w_out'],'wsp':KA['w_sp']}[mode])
    e('s_load_dwordx2',s(4,2),s(0,2),{'wo':KA['x'],'wout':KA['out'],'wsp':KA['b_sp']}[mode])
    mg,sh=magic(NTILES,nwg)
    e('s_mul_i32',s(28),s(2),mg); e('s_lshr_b32',s(28),s(28),sh)
    e('s_mul_i32',s(29),s(28),NTILES); e('s_sub_u32',s(29),s(2),s(29))
    e('s_lshl_b32',s(28),s(28),6); e('s_mul_i32',s(29),s(29),BN)
    e('v_and_b32',v(1),63,v(0)); e('v_lshrrev_b32',v(2),6,v(0)); e('v_readfirstlane_b32',s(30),v(2))
    e('s_waitcnt','lgkmcnt(0)')
    if mode=='wo':
        srd(e,12,8,9,S*512*2,WS_O); srd(e,16,6,7,512*512*2); srd(e,20,4,5,S*512*2); srd(e,24,8,9,S*512*2,WS_H)
    elif mode=='wout':
        srd(e,12,8,9,S*896*2,WS_U); srd(e,16,6,7,896*512*2); srd(e,20,8,9,S*512*2,WS_H); srd(e,24,4,5,S*512*2)
    else:
        srd(e,12,6,7,S*S*2); srd(e,16,8,9,896*S*2,WS_Z2T); srd(e,20,8,9,S*896*2,WS_Z1); srd(e,24,8,9,S*896*2,WS_U); srd(e,44,4,5,S*2)
    GA=8; LA=10; GB=12; LB=16
    e('s_mov_b32',s(34),lda*2); e('s_mov_b32',s(35),ldb*2)
    for i in range(2):
        e('v_add_u32',v(3),256*i,v(0)); e('v_lshrrev_b32',v(4),3,v(3)); e('v_and_b32',v(5),7,v(3))
        e('v_add_u32',v(6),s(28),v(4)); e('v_mul_u32_u24',v(6),s(34),v(6)); e('v_lshl_add_u32',v(GA+i),v(5),4,v(6))
        e('v_and_b32',v(6),7,v(4)); e('v_xor_b32',v(6),v(6),v(5)); e('v_lshlrev_b32',v(6),4,v(6)); e('v_lshl_add_u32',v(LA+i),v(4),7,v(6))
    for i in range(NCB):
        e('v_add_u32',v(3),256*i,v(0)); e('v_lshrrev_b32',v(4),3,v(3)); e('v_and_b32',v(5),7,v(3))
        if kn:
            e('v_mul_u32_u24',v(6),s(35),v(4)); e('s_lshl_b32',s(36),s(29),1); e('v_lshl_add_u32',v(6),v(5),4,v(6)); e('v_add_u32',v(GB+i),s(36),v(6))
            e('v_bfe_u32',v(6),v(4),2,1); e('v_bfe_u32',v(7),v(4),3,1)
            e('v_and_b32',v(4),'0xfffffff3',v(4)); e('v_lshl_or_b32',v(4),v(6),3,v(4)); e('v_lshl_or_b32',v(4),v(7),2,v(4))
            e('v_mul_u32_u24',v(6),SB if SB<=64 else s(37),v(4)) if False else None
            e('s_mov_b32',s(37),SB); e('v_mul_u32_u24',v(6),s(37),v(4)); e('v_lshl_add_u32',v(6),v(5),4,v(6)); e('v_add_u32',v(LB+i),ABUF,v(6))
        else:
            e('v_add_u32',v(6),s(29),v(4)); e('v_mul_u32_u24',v(6),s(35),v(6)); e('v_lshl_add_u32',v(GB+i),v(5),4,v(6))
            e('v_and_b32',v(6),7,v(4)); e('v_xor_b32',v(6),v(6),v(5)); e('v_lshlrev_b32',v(6),4,v(6)); e('v_lshl_add_u32',v(6),v(4),7,v(6)); e('v_add_u32',v(LB+i),ABUF,v(6))
    NL=2+NCB
    RD=[64,64+4*NL]
    SA_STEP=128; SB_STEP=(64*ldb*2 if kn else 128)
    def load(set_):
        for i in range(2): e('buffer_load_dwordx4',v(RD[set_]+4*i,4),v(GA+i),s(12,4),s(48),mods='offen')
        for i in range(NCB): e('buffer_load_dwordx4',v(RD[set_]+8+4*i,4),v(GB+i),s(16,4),s(49),mods='offen')
        e('s_add_u32',s(48),s(48),SA_STEP); e('s_add_u32',s(49),s(49),SB_STEP)
    def write(set_,buf):
        for i in range(2): e('ds_write_b128',v(LA+i),v(RD[set_]+4*i,4),mods='offset:%d'%(buf*BUF))
        for i in range(NCB): e('ds_write_b128',v(LB+i),v(RD[set_]+8+4*i,4),mods='offset:%d'%(buf*BUF))
    e('s_mov_b32',s(48),0); e('s_mov_b32',s(49),0)
    load(0); load(1)
    AA=20; BA=22
    e('v_lshrrev_b32',v(3),4,v(1)); e('v_and_b32',v(4),15,v(1))
    e('s_lshr_b32',s(37),s(30),1); e('s_lshl_b32',s(37),s(37),12)
    e('v_and_b32',v(6),7,v(4)); e('v_lshlrev_b32',v(5),7,v(4)); e('v_add_u32',v(5),s(37),v(5))
    for kk in range(2):
        e('v_add_u32',v(AA+kk),4*kk,v(3)); e('v_xor_b32',v(AA+kk),v(AA+kk),v(6)); e('v_lshl_add_u32',v(AA+kk),v(AA+kk),4,v(5))
    if kn:
        e('v_lshrrev_b32',v(5),1,v(3)); e('v_lshlrev_b32',v(5),4,v(5)); e('v_and_b32',v(6),1,v(3)); e('v_lshl_add_u32',v(5),v(6),2,v(5))
        e('v_lshrrev_b32',v(6),2,v(4)); e('v_add_u32',v(5),v(5),v(6))
        e('s_mov_b32',s(37),SB); e('v_mul_u32_u24',v(5),s(37),v(5))
        e('v_and_b32',v(6),3,v(4)); e('v_lshl_add_u32',v(5),v(6),3,v(5))
        e('s_and_b32',s(38),s(30),1); e('s_mul_i32',s(38),s(38),BN); e('s_add_u32',s(38),s(38),ABUF)
        e('v_add_u32',v(BA),s(38),v(5))
    else:
        e('s_and_b32',s(38),s(30),1); e('s_mul_i32',s(38),s(38),BN//2*128); e('s_add_u32',s(38),s(38),ABUF)
        e('v_and_b32',v(6),7,v(4)); e('v_lshlrev_b32',v(5),7,v(4)); e('v_add_u32',v(5),s(38),v(5))
        for kk in range(2):
            e('v_add_u32',v(BA+kk),4*kk,v(3)); e('v_xor_b32',v(BA+kk),v(BA+kk),v(6)); e('v_lshl_add_u32',v(BA+kk),v(BA+kk),4,v(5))
    AF=24; BF=32; ACC=128
    for r in range(2*NT*4): e('v_mov_b32',v(ACC+r),0)
    e('s_waitcnt','vmcnt(%d)'%NL); write(0,0); load(0)
    e('s_waitcnt','lgkmcnt(0)'); e('s_barrier')
    def compute(buf):
        for kk in range(2):
            for ti in range(2):
                e('ds_read_b128',v(AF+4*ti,4),v(AA+kk),mods='offset:%d'%(buf*BUF+ti*2048))
            for nj in range(NT):
                if kn:
                    o=buf*BUF+kk*32*SB+nj*32
                    e('ds_read_b64_tr_b16',v(BF+4*nj,2),v(BA),mods='offset:%d'%o)
                    e('ds_read_b64_tr_b16',v(BF+4*nj+2,2),v(BA),mods='offset:%d'%(o+8*SB))
                else:
                    e('ds_read_b128',v(BF+4*nj,4),v(BA+kk),mods='offset:%d'%(buf*BUF+nj*2048))
            per=2 if kn else 1
            for nj in range(NT):
                e('s_waitcnt','lgkmcnt(%d)'%(per*(NT-1-nj)))
                for ti in range(2):
                    a=v(ACC+(ti*NT+nj)*4,4)
                    e('v_mfma_f32_16x16x32_bf16',a,v(BF+4*nj,4),v(AF+4*ti,4),a)
    e('s_mov_b32',s(50),NST//2)
    e.label(name+'_loop')
    for half in range(2):
        compute(half)
        nx=half^1
        e('s_waitcnt','vmcnt(%d)'%NL); write(nx,nx); load(nx)
        e('s_waitcnt','lgkmcnt(0)'); e('s_barrier')
    e('s_sub_u32',s(50),s(50),1); e('s_cmp_lg_u32',s(50),0); e('s_cbranch_scc1',name+'_loop')
    e('s_nop',7)
    ldc=896 if mode=='wsp' else 512
    e('s_lshr_b32',s(37),s(30),1); e('s_lshl_b32',s(37),s(37),5); e('s_add_u32',s(37),s(37),s(28))
    e('s_and_b32',s(38),s(30),1); e('s_mul_i32',s(38),s(38),BN//2); e('s_add_u32',s(38),s(38),s(29))
    e('v_add_u32',v(7),s(37),v(4)); e('s_mov_b32',s(34),ldc*2); e('v_mul_u32_u24',v(5),s(34),v(7))
    e('v_lshl_add_u32',v(6),v(3),2,s(38)); e('v_lshl_add_u32',v(5),v(6),1,v(5))
    e('s_mov_b32',s(42),0); e('s_mov_b32',s(43),16*ldc*2)
    R=64
    e('s_waitcnt','vmcnt(0)')
    for ti in range(2):
        for nj in range(NT):
            e('buffer_load_dwordx2',v(R+(ti*NT+nj)*2,2),v(5),s(20,4),s(42+ti),mods='offen offset:%d'%(nj*32))
    if mode=='wsp':
        e('v_lshlrev_b32',v(7),1,v(7))
        e('buffer_load_ushort',v(120),v(7),s(44,4),0,mods='offen'); e('buffer_load_ushort',v(121),v(7),s(44,4),0,mods='offen offset:32')
    e('s_waitcnt','vmcnt(0)')
    if mode=='wsp':
        e('v_lshlrev_b32',v(120),16,v(120)); e('v_lshlrev_b32',v(121),16,v(121))
    for ti in range(2):
        for nj in range(NT):
            a=ACC+(ti*NT+nj)*4; r=R+(ti*NT+nj)*2
            e('v_cvt_pk_bf16_f32',v(a),v(a),v(a+1)); e('v_cvt_pk_bf16_f32',v(a+2),v(a+2),v(a+3))
            for h in range(2):
                p=a+2*h
                e('v_and_b32',v(a+1+2*h),'0xffff0000',v(p)); e('v_lshlrev_b32',v(p),16,v(p))
                e('v_and_b32',v(25),'0xffff0000',v(r+h)); e('v_lshlrev_b32',v(24),16,v(r+h))
                if mode=='wsp':
                    e('v_add_f32',v(p),v(p),v(120+ti)); e('v_add_f32',v(p+1),v(p+1),v(120+ti))
                    e('v_cvt_pk_bf16_f32',v(26),v(p),v(p+1)); e('v_and_b32',v(p+1),'0xffff0000',v(26)); e('v_lshlrev_b32',v(p),16,v(26))
                    e('v_mul_f32',v(p),v(p),v(24)); e('v_mul_f32',v(p+1),v(p+1),v(25))
                else:
                    e('v_add_f32',v(p),v(p),v(24)); e('v_add_f32',v(p+1),v(p+1),v(25))
                e('v_cvt_pk_bf16_f32',v(r+h),v(p),v(p+1))
            e('buffer_store_dwordx2',v(r,2),v(5),s(24,4),s(42+ti),mods='offen offset:%d'%(nj*32))
    e.label(name+'_end'); e('s_endpgm')

def attn(e,name):
    header(e,name)
    e('s_cmp_ge_u32',s(2),1024); e('s_cbranch_scc1',name+'_end')
    e('s_load_dwordx2',s(8,2),s(0,2),KA['ws'])
    e('v_and_b32',v(1),63,v(0)); e('v_lshrrev_b32',v(2),6,v(0)); e('v_readfirstlane_b32',s(30),v(2))
    e('s_lshr_b32',s(28),s(2),3); e('s_lshl_b32',s(28),s(28),4)
    e('s_and_b32',s(29),s(2),7); e('s_lshl_b32',s(29),s(29),2); e('s_add_u32',s(29),s(29),s(30))
    e('s_waitcnt','lgkmcnt(0)')
    srd(e,12,8,9,S*1024*2,WS_QK); srd(e,16,8,9,512*S*2,WS_VT); srd(e,20,8,9,S*512*2,WS_O)
    e('v_lshrrev_b32',v(3),4,v(1)); e('v_and_b32',v(4),15,v(1))
    e('v_add_u32',v(5),s(28),v(4)); e('v_lshlrev_b32',v(5),11,v(5)); e('v_lshl_add_u32',v(5),v(3),3,v(5))
    e('s_lshl_b32',s(31),s(29),5); e('v_add_u32',v(5),s(31),v(5))
    e('buffer_load_dwordx2',v(10,2),v(5),s(12,4),0,mods='offen')
    e('v_add_u32',v(6),1024-256*2048,v(5))
    KR=16
    for i in range(17):
        e('v_add_u32',v(7),i*16*2048,v(6))
        e('buffer_load_dwordx2',v(KR+2*i,2),v(7),s(12,4),0,mods='offen')
    e('s_lshl_b32',s(31),s(29),4); e('v_add_u32',v(8),s(31),v(4)); e('v_lshlrev_b32',v(8),12,v(8))
    e('s_sub_u32',s(31),s(28),256); e('v_lshl_add_u32',v(9),v(3),2,s(31)); e('v_lshl_add_u32',v(8),v(9),1,v(8))
    VR=52
    for i in range(18):
        e('buffer_load_dwordx2',v(VR+2*i,2),v(8),s(16,4),0,mods='offen offset:%d'%(32*i))
    SC=96
    e('v_mov_b32',v(12),0); e('v_mov_b32',v(13),0); e('v_mov_b32',v(14),0); e('v_mov_b32',v(15),0)
    for i in range(17):
        e('s_waitcnt','vmcnt(%d)'%(18+16-i))
        e('v_mfma_f32_16x16x16_bf16',v(SC+4*i,4),v(KR+2*i,2),v(10,2),v(12,4))
    e('s_nop',7)
    e('s_mov_b32',s(33),'0xce6e6b28')
    e('v_lshlrev_b32',v(9),2,v(3))
    for i in range(68):
        bf16r(e,v(SC+i),v(SC+i)); e('v_mul_f32',v(SC+i),0.25,v(SC+i))
    e('v_mov_b32',v(7),s(33))
    for r in range(4):
        e('v_add_u32',v(5),r,v(9))
        e('v_cmp_lt_u32','vcc',v(4),v(5)); e('v_cndmask_b32',v(SC+r),v(7),v(SC+r),'vcc')
        e('v_cmp_ge_u32','vcc',v(4),v(5)); e('v_cndmask_b32',v(SC+64+r),v(7),v(SC+64+r),'vcc')
    for i in range(16):
        e('s_cmp_ge_u32',s(28),256-16*i); e('s_cbranch_scc1',name+'_ok%d'%i)
        for r in range(4): e('v_mov_b32',v(SC+4*i+r),s(33))
        e.label(name+'_ok%d'%i)
    e('v_max3_f32',v(5),v(SC),v(SC+1),v(SC+2))
    for i in range(3,67,2): e('v_max3_f32',v(5),v(5),v(SC+i),v(SC+i+1))
    e('v_max_f32',v(5),v(5),v(SC+67))
    def xred(op,reg):
        e('v_mov_b32',v(6),v(reg)); e('v_permlane32_swap_b32',v(6),v(reg)); e(op,v(reg),v(reg),v(6))
        e('v_mov_b32',v(6),v(reg)); e('v_permlane16_swap_b32',v(6),v(reg)); e(op,v(reg),v(reg),v(6))
    xred('v_max_f32',5)
    e('s_mov_b32',s(34),'0x3fb8aa3b')
    e('v_mul_f32',v(5),s(34),v(5))
    e('v_mov_b32',v(8),0)
    for i in range(68):
        e('v_fma_f32',v(SC+i),v(SC+i),s(34),'-'+v(5)); e('v_exp_f32',v(SC+i),v(SC+i)); e('v_add_f32',v(8),v(8),v(SC+i))
    xred('v_add_f32',8)
    e('v_rcp_f32',v(8),v(8))
    for i in range(68): e('v_mul_f32',v(SC+i),v(SC+i),v(8))
    for i in range(34): e('v_cvt_pk_bf16_f32',v(SC+i),v(SC+2*i),v(SC+2*i+1))
    e('v_mov_b32',v(SC+34),0); e('v_mov_b32',v(SC+35),0)
    e('s_waitcnt','vmcnt(0)')
    for p in range(9):
        e('v_mfma_f32_16x16x32_bf16',v(12,4),v(VR+4*p,4),v(SC+4*p,4),v(12,4))
    e('s_nop',7)
    e('v_cvt_pk_bf16_f32',v(12),v(12),v(13)); e('v_cvt_pk_bf16_f32',v(13),v(14),v(15))
    e('v_add_u32',v(5),s(28),v(4)); e('v_lshlrev_b32',v(5),10,v(5)); e('v_lshl_add_u32',v(5),v(3),3,v(5))
    e('s_lshl_b32',s(31),s(29),5); e('v_add_u32',v(5),s(31),v(5))
    e('buffer_store_dwordx2',v(12,2),v(5),s(20,4),0,mods='offen')
    e.label(name+'_end'); e('s_endpgm')

def lnt(e,name):
    ST=1792+32
    header(e,name)
    e('s_cmp_ge_u32',s(2),64); e('s_cbranch_scc1',name+'_end')
    e('s_load_dwordx2',s(8,2),s(0,2),KA['ws'])
    e('v_and_b32',v(1),63,v(0)); e('v_lshrrev_b32',v(2),6,v(0)); e('v_readfirstlane_b32',s(30),v(2))
    e('s_lshl_b32',s(28),s(2),5)
    e('s_waitcnt','lgkmcnt(0)')
    srd(e,12,8,9,S*896*2,WS_Z2); srd(e,16,8,9,896*S*2,WS_Z2T)
    e('v_lshrrev_b32',v(3),3,v(0)); e('v_and_b32',v(4),7,v(0))
    e('v_add_u32',v(5),s(28),v(3)); e('s_mov_b32',s(34),1792); e('v_mul_u32_u24',v(5),s(34),v(5)); e('v_lshl_add_u32',v(5),v(4),4,v(5))
    X=32
    for i in range(14): e('buffer_load_dwordx4',v(X+4*i,4),v(5),s(12,4),0,mods='offen offset:%d'%(128*i))
    e('s_mov_b32',s(36),'0x3f803f80')
    for r in (24,25,26,27): e('v_mov_b32',v(r),0)
    e('s_waitcnt','vmcnt(0)')
    for i in range(56):
        e('v_lshlrev_b32',v(28),16,v(X+i)); e('v_and_b32',v(29),'0xffff0000',v(X+i))
        e('v_add_f32',v(24),v(24),v(28)); e('v_add_f32',v(25),v(25),v(29))
        e('v_fma_f32',v(26),v(28),v(28),v(26)); e('v_fma_f32',v(27),v(29),v(29),v(27))
    e('v_add_f32',v(24),v(24),v(25)); e('v_add_f32',v(26),v(26),v(27))
    for md in ('quad_perm:[1,0,3,2]','quad_perm:[2,3,0,1]','row_half_mirror'):
        e('v_add_f32_dpp',v(24),v(24),v(24),mods=md+' row_mask:0xf bank_mask:0xf')
        e('v_add_f32_dpp',v(26),v(26),v(26),mods=md+' row_mask:0xf bank_mask:0xf')
    e('v_mul_f32',v(24),'0x3a924925',v(24)); e('v_mul_f32',v(26),'0x3a924925',v(26))
    e('v_fma_f32',v(26),'-'+v(24),v(24),v(26)); e('v_max_f32',v(26),0,v(26))
    bf16r(e,v(24),v(24)); bf16r(e,v(26),v(26))
    e('v_add_f32',v(26),'0x3727c5ac',v(26)); bf16r(e,v(26),v(26))
    e('v_sqrt_f32',v(26),v(26)); bf16r(e,v(26),v(26)); e('v_rcp_f32',v(26),v(26))
    e('v_mul_f32',v(24),v(24),v(26)); e('v_sub_f32',v(24),0,v(24))
    e('s_mov_b32',s(34),ST); e('v_mul_u32_u24',v(6),s(34),v(3)); e('v_lshl_add_u32',v(6),v(4),4,v(6))
    for i in range(14):
        for d in range(4):
            r=X+4*i+d
            e('v_lshlrev_b32',v(28),16,v(r)); e('v_and_b32',v(29),'0xffff0000',v(r))
            e('v_fma_f32',v(28),v(28),v(26),v(24)); e('v_fma_f32',v(29),v(29),v(26),v(24))
            e('v_cvt_pk_bf16_f32',v(r),v(28),v(29))
        e('ds_write_b128',v(6),v(X+4*i,4),mods='offset:%d'%(128*i))
    e('s_waitcnt','lgkmcnt(0)'); e('s_barrier')
    e('v_lshrrev_b32',v(3),4,v(1)); e('v_and_b32',v(4),15,v(1))
    e('v_lshrrev_b32',v(5),2,v(4)); e('v_lshl_add_u32',v(5),v(3),2,v(5)); e('v_mul_u32_u24',v(5),s(34),v(5))
    e('v_and_b32',v(6),3,v(4)); e('v_lshl_add_u32',v(5),v(6),3,v(5))
    e('s_mul_i32',s(37),s(30),14*32); e('v_add_u32',v(5),s(37),v(5))
    e('s_mul_i32',s(37),s(30),224); e('v_add_u32',v(7),s(37),v(4)); e('v_lshlrev_b32',v(7),12,v(7))
    e('v_lshl_add_u32',v(8),v(3),2,s(28)); e('v_lshl_add_u32',v(7),v(8),1,v(7))
    for j in range(14):
        e('ds_read_b64_tr_b16',v(X+4*j,2),v(5),mods='offset:%d'%(32*j))
        e('ds_read_b64_tr_b16',v(X+4*j+2,2),v(5),mods='offset:%d'%(32*j+16*ST))
    for j in range(14):
        e('s_waitcnt','lgkmcnt(%d)'%min(15,2*(13-j)))
        e('s_mov_b32',s(38),j*16*4096)
        e('buffer_store_dwordx2',v(X+4*j,2),v(7),s(16,4),s(38),mods='offen')
        e('buffer_store_dwordx2',v(X+4*j+2,2),v(7),s(16,4),s(38),mods='offen offset:32')
    e.label(name+'_end'); e('s_endpgm')

def main():
    e=Emitter()
    ks=[('k1_qkv_kernel',256,64*1024+2*64*416,240,lambda n:lngemm(e,n,'qkv')),
        ('k2_attn_kernel',1024,0,168,lambda n:attn(e,n)),
        ('k3_wo_kernel',256,2*(8192+64*160),160,lambda n:gemm2(e,n,'wo')),
        ('k4_win_kernel',256,64*1024+2*64*480,240,lambda n:lngemm(e,n,'win')),
        ('k5_lnt_kernel',64,32*1824,96,lambda n:lnt(e,n)),
        ('k6_wsp_kernel',224,2*(8192+128*128),160,lambda n:gemm2(e,n,'wsp')),
        ('k7_wout_kernel',256,2*(8192+64*160),160,lambda n:gemm2(e,n,'wout'))]
    out=[]
    for n,g,l,nv,f in ks: out.append('; @launch kernel=%s grid=(%d,1,1) block=(256,1,1) lds=%d'%(n,g,l))
    out.append('.amdgcn_target "amdgcn-amd-amdhsa--gfx950"'); out.append('.text')
    for n,g,l,nv,f in ks: f(n)
    out.append(e.text())
    out.append('.section .rodata,"a"')
    for n,g,l,nv,f in ks:
        out.append('.p2align 6'); out.append(desc(n,nv))
    open(sys.argv[1],'w').write('\n'.join(out))
main()
```

```python
import sys
from emit import Emitter, v, s

S=2048; D=512
WS_QK=0; WS_VT=4<<20; WS_O=6<<20; WS_H=8<<20; WS_Z1=10<<20; WS_Z2=14<<20; WS_Z2T=18<<20; WS_U=22<<20
KA=dict(x=0,wqkv=8,wo=16,bx=24,w_in=32,w_sp=40,b_sp=48,w_out=56,out=64,dbg=72,ws=80)

def srd(e,R,lo,hi,size,off=0):
    if off:
        e('s_add_u32',s(R),s(lo),hex(off))
        e('s_addc_u32',s(R+1),s(hi),0)
        e('s_and_b32',s(R+1),s(R+1),'0xffff')
    else:
        e('s_mov_b32',s(R),s(lo))
        e('s_and_b32',s(R+1),s(hi),'0xffff')
    e('s_mov_b32',s(R+2),hex(size))
    e('s_mov_b32',s(R+3),'0x00020000')

def magic(div,maxq):
    for sh in range(16,24):
        m=(1<<sh)//div+1
        if m*maxq<(1<<32) and m<(1<<24) and all((q*m)>>sh==q//div for q in range(maxq)): return m,sh
    raise Exception('no magic')

def bf16r(e,dst,src,tmp=None):
    e('v_cvt_pk_bf16_f32',dst,src,src)
    e('v_lshlrev_b32',dst,16,dst)

def header(e,name):
    e.raw('.p2align 8'); e.raw('.globl %s'%name); e.raw('.type %s,@function'%name); e.raw('%s:'%name); e.hist=[]

def desc(name,nv,ns=102):
    acc=(nv+3)//4*4
    return '''.amdhsa_kernel %s
  .amdhsa_next_free_vgpr %d
  .amdhsa_next_free_sgpr %d
  .amdhsa_accum_offset %d
  .amdhsa_group_segment_fixed_size 0
  .amdhsa_kernarg_size 88
  .amdhsa_user_sgpr_count 2
  .amdhsa_user_sgpr_kernarg_segment_ptr 1
  .amdhsa_system_sgpr_workgroup_id_x 1
.end_amdhsa_kernel
'''%(name,nv,ns,acc)

def lngemm(e,name,mode):
    if mode=='qkv': N=1536; BN=192
    else: N=1792; BN=224
    NT=BN//32; CPR=BN//8; NC=(64*CPR+511)//512; PART=(64*CPR)%512; SB=BN*2+32
    assert (SB//32)%2==1
    BUF=64*SB; LDS_B=65536
    header(e,name)
    e('s_cmp_ge_u32',s(2),256); e('s_cbranch_scc1',name+'_end')
    e('s_load_dwordx2',s(4,2),s(0,2),KA['x'])
    e('s_load_dwordx2',s(6,2),s(0,2),KA['wqkv'] if mode=='qkv' else KA['w_in'])
    e('s_load_dwordx2',s(8,2),s(0,2),KA['ws'])
    e('s_lshr_b32',s(28),s(2),3); e('s_lshl_b32',s(28),s(28),6)
    e('s_and_b32',s(29),s(2),7); e('s_mul_i32',s(29),s(29),BN)
    e('v_and_b32',v(1),63,v(0))
    e('v_lshrrev_b32',v(2),6,v(0))
    e('v_readfirstlane_b32',s(30),v(2))
    e('s_waitcnt','lgkmcnt(0)')
    if mode=='qkv':
        srd(e,12,4,5,S*D*2)
        srd(e,20,8,9,S*1024*2,WS_QK); srd(e,24,8,9,512*S*2,WS_VT)
    else:
        srd(e,12,8,9,S*D*2,WS_H)
        srd(e,20,8,9,S*896*2,WS_Z1); srd(e,24,8,9,S*896*2,WS_Z2)
    srd(e,16,6,7,512*N*2)
    e('s_mov_b32',s(48),PART if PART else 512)
    GO=8; LO=16
    m,sh=magic(CPR,512*NC)
    e('s_mov_b32',s(32),m)
    e('s_lshl_b32',s(33),s(29),1)
    for i in range(NC):
        e('v_add_u32',v(3),512*i,v(0))
        e('v_mul_u32_u24',v(4),s(32),v(3)); e('v_lshrrev_b32',v(4),sh,v(4))
        e('v_mul_u32_u24',v(5),CPR,v(4)); e('v_sub_u32',v(5),v(3),v(5))
        e('v_lshlrev_b32',v(5),4,v(5))
        e('s_mov_b32',s(34),N*2)
        e('v_mul_u32_u24',v(GO+i),s(34),v(4)); e('v_add3_u32',v(GO+i),v(GO+i),v(5),s(33))
        e('v_bfe_u32',v(6),v(4),2,1); e('v_bfe_u32',v(7),v(4),3,1)
        e('v_and_b32',v(4),'0xfffffff3',v(4)); e('v_lshl_or_b32',v(4),v(6),3,v(4)); e('v_lshl_or_b32',v(4),v(7),2,v(4))
        e('s_mov_b32',s(34),SB)
        e('v_mul_u32_u24',v(LO+i),s(34),v(4)); e('v_add_u32',v(LO+i),v(LO+i),v(5))
        e('v_add_u32',v(LO+i),LDS_B,v(LO+i))
    BD=[184,212,100]
    STG=64*N*2
    def loadB(set_,stage):
        e('s_mov_b32',s(35),stage*STG)
        for i in range(NC):
            e('buffer_load_dwordx4',v(BD[set_]+4*i,4),v(GO+i),s(16,4),s(35),mods='offen')
    def writeB(set_,buf):
        for i in range(NC):
            if PART and i==NC-1: e('s_mov_b64','exec',s(46,2))
            e('ds_write_b128',v(LO+i),v(BD[set_]+4*i,4),mods='offset:%d'%(buf*BUF))
            if PART and i==NC-1: e('s_mov_b64','exec',-1)
    e('v_cmp_gt_u32',s(46,2),s(48),v(0))
    loadB(0,0); loadB(1,1)
    X=64
    e('v_lshrrev_b32',v(3),3,v(0))
    e('v_and_b32',v(4),7,v(0))
    e('v_add_u32',v(5),s(28),v(3)); e('v_lshlrev_b32',v(5),10,v(5)); e('v_lshl_add_u32',v(5),v(4),4,v(5))
    for i in range(8):
        e('buffer_load_dwordx4',v(X+4*i,4),v(5),s(12,4),0,mods='offen offset:%d'%(128*i))
    e('s_mov_b32',s(36),'0x3f803f80')
    for r in (24,25,26,27): e('v_mov_b32',v(r),0)
    e('s_waitcnt','vmcnt(0)')
    for i in range(32):
        e('v_lshlrev_b32',v(28),16,v(X+i)); e('v_and_b32',v(29),'0xffff0000',v(X+i))
        e('v_add_f32',v(24),v(24),v(28)); e('v_add_f32',v(25),v(25),v(29))
        e('v_fma_f32',v(26),v(28),v(28),v(26)); e('v_fma_f32',v(27),v(29),v(29),v(27))
    e('v_add_f32',v(24),v(24),v(25)); e('v_add_f32',v(26),v(26),v(27))
    for md in ('quad_perm:[1,0,3,2]','quad_perm:[2,3,0,1]','row_half_mirror'):
        e('v_add_f32_dpp',v(24),v(24),v(24),mods=md+' row_mask:0xf bank_mask:0xf')
        e('v_add_f32_dpp',v(26),v(26),v(26),mods=md+' row_mask:0xf bank_mask:0xf')
    e('v_mul_f32',v(24),'0x3b000000',v(24))
    e('v_mul_f32',v(26),'0x3b000000',v(26))
    e('v_fma_f32',v(26),'-'+v(24),v(24),v(26)); e('v_max_f32',v(26),0,v(26))
    bf16r(e,v(24),v(24)); bf16r(e,v(26),v(26))
    e('v_add_f32',v(26),'0x3727c5ac',v(26)); bf16r(e,v(26),v(26))
    e('v_sqrt_f32',v(26),v(26)); bf16r(e,v(26),v(26))
    e('v_rcp_f32',v(26),v(26))
    e('v_mul_f32',v(24),v(24),v(26)); e('v_sub_f32',v(24),0,v(24))
    e('v_and_b32',v(6),15,v(3)); e('v_lshlrev_b32',v(7),10,v(3))
    for j in range(2):
        e('v_add_u32',v(28+j),8*j,v(4)); e('v_xor_b32',v(28+j),v(28+j),v(6)); e('v_lshl_add_u32',v(28+j),v(28+j),4,v(7))
    for i in range(8):
        for d in range(4):
            r=X+4*i+d
            e('v_lshlrev_b32',v(32),16,v(r)); e('v_and_b32',v(33),'0xffff0000',v(r))
            e('v_fma_f32',v(32),v(32),v(26),v(24)); e('v_fma_f32',v(33),v(33),v(26),v(24))
            e('v_cvt_pk_bf16_f32',v(r),v(32),v(33))
        e('ds_write_b128',v(28+(i&1)),v(X+4*i,4),mods='offset:%d'%((i>>1)*256))
    AA=36
    e('v_lshrrev_b32',v(3),4,v(1)); e('v_and_b32',v(4),15,v(1))
    e('s_lshr_b32',s(37),s(30),1); e('s_lshl_b32',s(37),s(37),14)
    e('v_lshlrev_b32',v(5),10,v(4)); e('v_add_u32',v(5),s(37),v(5))
    for j in range(4):
        e('v_add_u32',v(AA+j),4*j,v(3)); e('v_xor_b32',v(AA+j),v(AA+j),v(4)); e('v_lshl_add_u32',v(AA+j),v(AA+j),4,v(5))
    BA=40
    e('v_lshrrev_b32',v(5),1,v(3)); e('v_lshlrev_b32',v(5),4,v(5)); e('v_and_b32',v(6),1,v(3)); e('v_lshl_add_u32',v(5),v(6),2,v(5))
    e('v_lshrrev_b32',v(6),2,v(4)); e('v_add_u32',v(5),v(5),v(6))
    e('s_mov_b32',s(34),SB); e('v_mul_u32_u24',v(5),s(34),v(5))
    e('v_and_b32',v(6),3,v(4)); e('v_lshl_add_u32',v(5),v(6),3,v(5))
    e('s_and_b32',s(38),s(30),1); e('s_mul_i32',s(38),s(38),BN)
    e('s_add_u32',s(38),s(38),LDS_B)
    e('v_add_u32',v(BA),s(38),v(5))
    ACC=128; AF=64; BF=72
    def mainloop(flags):
        for r in range(NT*4): e('v_mov_b32',v(ACC+r),0)
        for st in range(8):
            buf=st&1
            for kk in range(2):
                for ti in range(1):
                    e('ds_read_b128',v(AF+4*ti,4),v(AA+(2*(st&1)+kk)),mods='offset:%d'%(ti*16384+(st>>1)*256))
                for nj in range(NT):
                    o=buf*BUF+kk*32*SB+nj*32
                    e('ds_read_b64_tr_b16',v(BF+4*nj,2),v(BA),mods='offset:%d'%o)
                    e('ds_read_b64_tr_b16',v(BF+4*nj+2,2),v(BA),mods='offset:%d'%(o+8*SB))
                for nj in range(NT):
                    e('s_waitcnt','lgkmcnt(%d)'%(2*(NT-1-nj)))
                    for ti in range(1):
                        a=v(ACC+(ti*NT+nj)*4,4)
                        if flags[nj]: e('v_mfma_f32_16x16x32_bf16',a,v(AF+4*ti,4),v(BF+4*nj,4),a)
                        else: e('v_mfma_f32_16x16x32_bf16',a,v(BF+4*nj,4),v(AF+4*ti,4),a)
            if st<7:
                e('s_waitcnt','vmcnt(%d)'%(NC*min(2,6-st)))
                writeB((st+1)%3,(st+1)&1)
                if st+4<8: loadB((st+1)%3,st+4)
                e('s_waitcnt','lgkmcnt(0)')
                e('s_barrier')
    def epilogue(flags):
        e('s_nop',7)
        e('s_lshr_b32',s(37),s(30),1); e('s_lshl_b32',s(37),s(37),4); e('s_add_u32',s(37),s(37),s(28))
        e('s_and_b32',s(38),s(30),1); e('s_mul_i32',s(38),s(38),BN//2); e('s_add_u32',s(38),s(38),s(29))
        LD=1024 if mode=='qkv' else 896
        e('v_add_u32',v(5),s(37),v(4)); e('s_mov_b32',s(34),LD*2); e('v_mul_u32_u24',v(5),s(34),v(5))
        e('v_lshl_add_u32',v(6),v(3),2,s(38))
        if mode=='win':
            e('s_cmp_ge_u32',s(29),896); e('s_cselect_b32',s(39),896,0)
            e('v_subrev_u32',v(7),s(39),v(6)); e('v_lshl_add_u32',v(5),v(7),1,v(5))
        else:
            e('v_lshl_add_u32',v(5),v(6),1,v(5))
            e('v_add_u32',v(7),s(38),v(4)); e('v_subrev_u32',v(7),1024,v(7)); e('v_lshlrev_b32',v(7),12,v(7))
            e('v_lshl_add_u32',v(8),v(3),2,s(37)); e('v_lshl_add_u32',v(7),v(8),1,v(7))
        for ti in range(1):
            for nj in range(NT):
                a=ACC+(ti*NT+nj)*4
                if mode=='win':
                    for r in range(4):
                        x=v(a+r)
                        bf16r(e,x,x)
                        e('v_mul_f32',v(32),x,x); e('v_mul_f32',v(32),x,v(32))
                        e('v_fma_f32',v(32),v(32),s(40),x)
                        e('v_mul_f32',v(32),s(41),v(32))
                        e('v_exp_f32',v(32),v(32)); e('v_add_f32',v(32),1.0,v(32)); e('v_rcp_f32',v(32),v(32))
                        e('v_mul_f32',x,x,v(32))
                e('v_cvt_pk_bf16_f32',v(a),v(a),v(a+1)); e('v_cvt_pk_bf16_f32',v(a+1),v(a+2),v(a+3))
                if flags[nj]:
                    e('buffer_store_dwordx2',v(a,2),v(7),s(24,4),0,mods='offen offset:%d'%(ti*32))
                else:
                    e('buffer_store_dwordx2',v(a,2),v(5),s(20,4),s(42+ti),mods='offen offset:%d'%(nj*32))
    loadB(2,2)
    e('s_waitcnt','vmcnt(%d)'%(2*NC))
    writeB(0,0); loadB(0,3)
    e('s_waitcnt','lgkmcnt(0)'); e('s_barrier')
    LD=1024 if mode=='qkv' else 896
    e('s_mov_b32',s(42),0); e('s_mov_b32',s(43),16*LD*2)
    if mode=='win':
        e('s_mov_b32',s(40),'0x3d372713'); e('s_mov_b32',s(41),'0xc0135761')
        mainloop([False]*NT)
        e('s_cmp_ge_u32',s(29),896); e('s_cbranch_scc0',name+'_z1')
        for i in range(4): e('s_mov_b32',s(20+i),s(24+i))
        e.label(name+'_z1')
        epilogue([False]*NT)
    else:
        e('s_and_b32',s(38),s(30),1); e('s_mul_i32',s(38),s(38),BN//2); e('s_add_u32',s(38),s(38),s(29))
        e('s_cmp_ge_u32',s(38),1024); e('s_cbranch_scc1',name+'_v')
        e('s_cmp_eq_u32',s(38),960); e('s_cbranch_scc1',name+'_mx')
        for lab,fl in ((None,[False]*6),('_v',[True]*6),('_mx',[False]*4+[True]*2)):
            if lab: e.label(name+lab)
            mainloop(fl)
            qkv_epi(e,fl,NT,ACC)
            e('s_endpgm')
    e.label(name+'_end')
    e('s_endpgm')

def qkv_epi(e,flags,NT,ACC):
    e('s_nop',7)
    e('s_lshr_b32',s(37),s(30),1); e('s_lshl_b32',s(37),s(37),4); e('s_add_u32',s(37),s(37),s(28))
    e('s_and_b32',s(38),s(30),1); e('s_mul_i32',s(38),s(38),96); e('s_add_u32',s(38),s(38),s(29))
    e('s_lshl_b32',s(38),s(38),12)
    e('v_add_u32',v(5),s(37),v(4)); e('v_lshlrev_b32',v(5),5,v(5)); e('v_lshl_add_u32',v(5),v(3),3,v(5))
    e('s_lshl_b32',s(37),s(37),5)
    e('v_lshlrev_b32',v(7),5,v(4)); e('v_lshl_add_u32',v(7),v(3),3,v(7)); e('v_add_u32',v(7),s(37),v(7))
    for ti in range(1):
        for nj in range(NT):
            a=ACC+(ti*NT+nj)*4
            e('v_cvt_pk_bf16_f32',v(a),v(a),v(a+1)); e('v_cvt_pk_bf16_f32',v(a+1),v(a+2),v(a+3))
            if flags[nj]:
                e('s_add_u32',s(44),s(38),nj*65536-(64<<16))
                e('buffer_store_dwordx2',v(a,2),v(7),s(24,4),s(44),mods='offen offset:%d'%(ti*512))
            else:
                e('s_add_u32',s(44),s(38),nj*65536)
                e('buffer_store_dwordx2',v(a,2),v(5),s(20,4),s(44),mods='offen offset:%d'%(ti*512))

def gemm2(e,name,mode):
    if mode=='wo':   K=512;  BN=64;  NTILES=8;  kn=True;  lda=512;  ldb=512
    if mode=='wout': K=896;  BN=64;  NTILES=8;  kn=True;  lda=896;  ldb=512
    if mode=='wsp':  K=2048; BN=128; NTILES=7;  kn=False; lda=2048; ldb=2048
    NST=K//64; NT=BN//32; nwg=32*NTILES
    NCB=1 if kn else BN*8//512
    SB=160
    ABUF=8192; BBUF=(64*SB if kn else BN*128); BUF=ABUF+BBUF
    header(e,name)
    e('s_cmp_ge_u32',s(2),nwg); e('s_cbranch_scc1',name+'_end')
    e('s_load_dwordx2',s(8,2),s(0,2),KA['ws'])
    e('s_load_dwordx2',s(6,2),s(0,2),{'wo':KA['wo'],'wout':KA['w_out'],'wsp':KA['w_sp']}[mode])
    e('s_load_dwordx2',s(4,2),s(0,2),{'wo':KA['x'],'wout':KA['out'],'wsp':KA['b_sp']}[mode])
    mg,sh=magic(NTILES,nwg)
    if mode=='wsp':
        e('s_lshr_b32',s(31),s(2),3); e('s_mul_i32',s(28),s(31),mg); e('s_lshr_b32',s(28),s(28),sh)
        e('s_mul_i32',s(29),s(28),NTILES); e('s_sub_u32',s(29),s(31),s(29))
        e('s_and_b32',s(31),s(2),7); e('s_lshl_b32',s(31),s(31),2); e('s_add_u32',s(28),s(28),s(31))
    else:
        e('s_mul_i32',s(28),s(2),mg); e('s_lshr_b32',s(28),s(28),sh)
        e('s_mul_i32',s(29),s(28),NTILES); e('s_sub_u32',s(29),s(2),s(29))
    e('s_lshl_b32',s(28),s(28),6); e('s_mul_i32',s(29),s(29),BN)
    e('v_and_b32',v(1),63,v(0)); e('v_lshrrev_b32',v(2),6,v(0)); e('v_readfirstlane_b32',s(30),v(2))
    e('s_waitcnt','lgkmcnt(0)')
    if mode=='wo':
        srd(e,12,8,9,S*512*2,WS_O); srd(e,16,6,7,512*512*2); srd(e,20,4,5,S*512*2); srd(e,24,8,9,S*512*2,WS_H)
    elif mode=='wout':
        srd(e,12,8,9,S*896*2,WS_U); srd(e,16,6,7,896*512*2); srd(e,20,8,9,S*512*2,WS_H); srd(e,24,4,5,S*512*2)
    else:
        srd(e,12,6,7,S*S*2); srd(e,16,8,9,896*S*2,WS_Z2T); srd(e,20,8,9,S*896*2,WS_Z1); srd(e,24,8,9,S*896*2,WS_U); srd(e,44,4,5,S*2)
    GA=8; LA=10; GB=12; LB=16
    e('s_mov_b32',s(34),lda*2); e('s_mov_b32',s(35),ldb*2)
    for i in range(1):
        e('v_add_u32',v(3),512*i,v(0)); e('v_lshrrev_b32',v(4),3,v(3)); e('v_and_b32',v(5),7,v(3))
        e('v_add_u32',v(6),s(28),v(4)); e('v_mul_u32_u24',v(6),s(34),v(6)); e('v_lshl_add_u32',v(GA+i),v(5),4,v(6))
        e('v_and_b32',v(6),7,v(4)); e('v_xor_b32',v(6),v(6),v(5)); e('v_lshlrev_b32',v(6),4,v(6)); e('v_lshl_add_u32',v(LA+i),v(4),7,v(6))
    for i in range(NCB):
        e('v_add_u32',v(3),512*i,v(0)); e('v_lshrrev_b32',v(4),3,v(3)); e('v_and_b32',v(5),7,v(3))
        if kn:
            e('v_mul_u32_u24',v(6),s(35),v(4)); e('s_lshl_b32',s(36),s(29),1); e('v_lshl_add_u32',v(6),v(5),4,v(6)); e('v_add_u32',v(GB+i),s(36),v(6))
            e('v_bfe_u32',v(6),v(4),2,1); e('v_bfe_u32',v(7),v(4),3,1)
            e('v_and_b32',v(4),'0xfffffff3',v(4)); e('v_lshl_or_b32',v(4),v(6),3,v(4)); e('v_lshl_or_b32',v(4),v(7),2,v(4))
            e('v_mul_u32_u24',v(6),SB if SB<=64 else s(37),v(4)) if False else None
            e('s_mov_b32',s(37),SB); e('v_mul_u32_u24',v(6),s(37),v(4)); e('v_lshl_add_u32',v(6),v(5),4,v(6)); e('v_add_u32',v(LB+i),ABUF,v(6))
        else:
            e('v_add_u32',v(6),s(29),v(4)); e('v_mul_u32_u24',v(6),s(35),v(6)); e('v_lshl_add_u32',v(GB+i),v(5),4,v(6))
            e('v_and_b32',v(6),7,v(4)); e('v_xor_b32',v(6),v(6),v(5)); e('v_lshlrev_b32',v(6),4,v(6)); e('v_lshl_add_u32',v(6),v(4),7,v(6)); e('v_add_u32',v(LB+i),ABUF,v(6))
    NL=1+NCB
    DP=4
    RD=[64+4*NL*j for j in range(DP)]
    SA_STEP=128; SB_STEP=(64*ldb*2 if kn else 128)
    def load(set_):
        for i in range(1): e('buffer_load_dwordx4',v(RD[set_]+4*i,4),v(GA+i),s(12,4),s(48),mods='offen')
        for i in range(NCB): e('buffer_load_dwordx4',v(RD[set_]+4+4*i,4),v(GB+i),s(16,4),s(49),mods='offen')
        e('s_add_u32',s(48),s(48),SA_STEP); e('s_add_u32',s(49),s(49),SB_STEP)
    def write(set_,buf):
        for i in range(1): e('ds_write_b128',v(LA+i),v(RD[set_]+4*i,4),mods='offset:%d'%(buf*BUF))
        for i in range(NCB): e('ds_write_b128',v(LB+i),v(RD[set_]+4+4*i,4),mods='offset:%d'%(buf*BUF))
    e('s_mov_b32',s(48),0); e('s_mov_b32',s(49),0)
    for j in range(DP): load(j)
    AA=20; BA=22
    e('v_lshrrev_b32',v(3),4,v(1)); e('v_and_b32',v(4),15,v(1))
    e('s_lshr_b32',s(37),s(30),1); e('s_lshl_b32',s(37),s(37),11)
    e('v_and_b32',v(6),7,v(4)); e('v_lshlrev_b32',v(5),7,v(4)); e('v_add_u32',v(5),s(37),v(5))
    for kk in range(2):
        e('v_add_u32',v(AA+kk),4*kk,v(3)); e('v_xor_b32',v(AA+kk),v(AA+kk),v(6)); e('v_lshl_add_u32',v(AA+kk),v(AA+kk),4,v(5))
    if kn:
        e('v_lshrrev_b32',v(5),1,v(3)); e('v_lshlrev_b32',v(5),4,v(5)); e('v_and_b32',v(6),1,v(3)); e('v_lshl_add_u32',v(5),v(6),2,v(5))
        e('v_lshrrev_b32',v(6),2,v(4)); e('v_add_u32',v(5),v(5),v(6))
        e('s_mov_b32',s(37),SB); e('v_mul_u32_u24',v(5),s(37),v(5))
        e('v_and_b32',v(6),3,v(4)); e('v_lshl_add_u32',v(5),v(6),3,v(5))
        e('s_and_b32',s(38),s(30),1); e('s_mul_i32',s(38),s(38),BN); e('s_add_u32',s(38),s(38),ABUF)
        e('v_add_u32',v(BA),s(38),v(5))
    else:
        e('s_and_b32',s(38),s(30),1); e('s_mul_i32',s(38),s(38),BN//2*128); e('s_add_u32',s(38),s(38),ABUF)
        e('v_and_b32',v(6),7,v(4)); e('v_lshlrev_b32',v(5),7,v(4)); e('v_add_u32',v(5),s(38),v(5))
        for kk in range(2):
            e('v_add_u32',v(BA+kk),4*kk,v(3)); e('v_xor_b32',v(BA+kk),v(BA+kk),v(6)); e('v_lshl_add_u32',v(BA+kk),v(BA+kk),4,v(5))
    AF=24; BF=32; ACC=192
    for r in range(NT*4): e('v_mov_b32',v(ACC+r),0)
    e('s_waitcnt','vmcnt(%d)'%((DP-1)*NL)); write(0,0); load(0)
    e('s_waitcnt','lgkmcnt(0)'); e('s_barrier')
    def compute(buf):
        for kk in range(2):
            for ti in range(1):
                e('ds_read_b128',v(AF+4*ti,4),v(AA+kk),mods='offset:%d'%(buf*BUF+ti*2048))
            for nj in range(NT):
                if kn:
                    o=buf*BUF+kk*32*SB+nj*32
                    e('ds_read_b64_tr_b16',v(BF+4*nj,2),v(BA),mods='offset:%d'%o)
                    e('ds_read_b64_tr_b16',v(BF+4*nj+2,2),v(BA),mods='offset:%d'%(o+8*SB))
                else:
                    e('ds_read_b128',v(BF+4*nj,4),v(BA+kk),mods='offset:%d'%(buf*BUF+nj*2048))
            per=2 if kn else 1
            for nj in range(NT):
                e('s_waitcnt','lgkmcnt(%d)'%(per*(NT-1-nj)))
                for ti in range(1):
                    a=v(ACC+(ti*NT+nj)*4,4)
                    e('v_mfma_f32_16x16x32_bf16',a,v(BF+4*nj,4),v(AF+4*ti,4),a)
    U=NST if NST<=16 else DP
    e('s_mov_b32',s(50),NST//U)
    e.label(name+'_loop')
    for st in range(U):
        compute(st&1)
        nx=(st+1)%DP
        e('s_waitcnt','vmcnt(%d)'%((DP-1)*NL)); write(nx,(st+1)&1); load(nx)
        e('s_waitcnt','lgkmcnt(0)'); e('s_barrier')
    if U!=NST:
        e('s_sub_u32',s(50),s(50),1); e('s_cmp_lg_u32',s(50),0); e('s_cbranch_scc1',name+'_loop')
    e('s_nop',7)
    ldc=896 if mode=='wsp' else 512
    e('s_lshr_b32',s(37),s(30),1); e('s_lshl_b32',s(37),s(37),4); e('s_add_u32',s(37),s(37),s(28))
    e('s_and_b32',s(38),s(30),1); e('s_mul_i32',s(38),s(38),BN//2); e('s_add_u32',s(38),s(38),s(29))
    e('v_add_u32',v(7),s(37),v(4)); e('s_mov_b32',s(34),ldc*2); e('v_mul_u32_u24',v(5),s(34),v(7))
    e('v_lshl_add_u32',v(6),v(3),2,s(38)); e('v_lshl_add_u32',v(5),v(6),1,v(5))
    e('s_mov_b32',s(42),0); e('s_mov_b32',s(43),16*ldc*2)
    R=64
    e('s_waitcnt','vmcnt(0)')
    for ti in range(1):
        for nj in range(NT):
            e('buffer_load_dwordx2',v(R+(ti*NT+nj)*2,2),v(5),s(20,4),s(42+ti),mods='offen offset:%d'%(nj*32))
    if mode=='wsp':
        e('v_lshlrev_b32',v(7),1,v(7))
        e('buffer_load_ushort',v(120),v(7),s(44,4),0,mods='offen'); e('buffer_load_ushort',v(121),v(7),s(44,4),0,mods='offen offset:32')
    e('s_waitcnt','vmcnt(0)')
    if mode=='wsp':
        e('v_lshlrev_b32',v(120),16,v(120)); e('v_lshlrev_b32',v(121),16,v(121))
    for ti in range(1):
        for nj in range(NT):
            a=ACC+(ti*NT+nj)*4; r=R+(ti*NT+nj)*2
            e('v_cvt_pk_bf16_f32',v(a),v(a),v(a+1)); e('v_cvt_pk_bf16_f32',v(a+2),v(a+2),v(a+3))
            for h in range(2):
                p=a+2*h
                e('v_and_b32',v(a+1+2*h),'0xffff0000',v(p)); e('v_lshlrev_b32',v(p),16,v(p))
                e('v_and_b32',v(25),'0xffff0000',v(r+h)); e('v_lshlrev_b32',v(24),16,v(r+h))
                if mode=='wsp':
                    e('v_add_f32',v(p),v(p),v(120+ti)); e('v_add_f32',v(p+1),v(p+1),v(120+ti))
                    e('v_cvt_pk_bf16_f32',v(26),v(p),v(p+1)); e('v_and_b32',v(p+1),'0xffff0000',v(26)); e('v_lshlrev_b32',v(p),16,v(26))
                    e('v_mul_f32',v(p),v(p),v(24)); e('v_mul_f32',v(p+1),v(p+1),v(25))
                else:
                    e('v_add_f32',v(p),v(p),v(24)); e('v_add_f32',v(p+1),v(p+1),v(25))
                e('v_cvt_pk_bf16_f32',v(r+h),v(p),v(p+1))
            e('buffer_store_dwordx2',v(r,2),v(5),s(24,4),s(42+ti),mods='offen offset:%d'%(nj*32))
    e.label(name+'_end'); e('s_endpgm')

def attn(e,name):
    header(e,name)
    e('s_cmp_ge_u32',s(2),1024); e('s_cbranch_scc1',name+'_end')
    e('s_load_dwordx2',s(8,2),s(0,2),KA['ws'])
    e('v_and_b32',v(1),63,v(0)); e('v_lshrrev_b32',v(2),6,v(0)); e('v_readfirstlane_b32',s(30),v(2))
    e('s_lshr_b32',s(28),s(2),3); e('s_lshl_b32',s(28),s(28),4)
    e('s_and_b32',s(29),s(2),7); e('s_lshl_b32',s(29),s(29),2); e('s_add_u32',s(29),s(29),s(30))
    e('s_waitcnt','lgkmcnt(0)')
    srd(e,12,8,9,S*1024*2,WS_QK); srd(e,16,8,9,512*S*2+8192,WS_VT-8192); srd(e,20,8,9,S*512*2,WS_O)
    e('s_mov_b32',s(40),4096); e('s_mov_b32',s(41),8192)
    e('v_lshrrev_b32',v(3),4,v(1)); e('v_and_b32',v(4),15,v(1))
    e('v_add_u32',v(5),s(28),v(4)); e('v_lshlrev_b32',v(5),5,v(5)); e('v_lshl_add_u32',v(5),v(3),3,v(5))
    e('s_lshl_b32',s(31),s(29),16); e('v_add_u32',v(5),s(31),v(5))
    e('buffer_load_dwordx2',v(10,2),v(5),s(12,4),0,mods='offen')
    e('v_add_u32',v(6),(32<<16)-256*32,v(5))
    KR=16
    for i in range(17):
        e('buffer_load_dwordx2',v(KR+2*i,2),v(6),s(12,4),[0,s(40),s(41)][i>>3],mods='offen offset:%d'%((i&7)*512))
    e('s_lshl_b32',s(32),s(28),5); e('s_add_u32',s(31),s(31),s(32))
    e('v_lshlrev_b32',v(8),5,v(4)); e('v_lshl_add_u32',v(8),v(3),3,v(8)); e('v_add_u32',v(8),s(31),v(8))
    VR=52
    for i in range(18):
        e('buffer_load_dwordx2',v(VR+2*i,2),v(8),s(16,4),[0,s(40),s(41)][i>>3],mods='offen offset:%d'%((i&7)*512))
    SC=96
    e('v_mov_b32',v(12),0); e('v_mov_b32',v(13),0); e('v_mov_b32',v(14),0); e('v_mov_b32',v(15),0)
    for i in range(17):
        e('s_waitcnt','vmcnt(%d)'%(18+16-i))
        e('v_mfma_f32_16x16x16_bf16',v(SC+4*i,4),v(KR+2*i,2),v(10,2),v(12,4))
    e('s_nop',7)
    e('s_mov_b32',s(33),'0xce6e6b28')
    e('v_lshlrev_b32',v(9),2,v(3))
    for i in range(68):
        bf16r(e,v(SC+i),v(SC+i)); e('v_mul_f32',v(SC+i),0.25,v(SC+i))
    e('v_mov_b32',v(7),s(33))
    for r in range(4):
        e('v_add_u32',v(5),r,v(9))
        e('v_cmp_lt_u32','vcc',v(4),v(5)); e('v_cndmask_b32',v(SC+r),v(7),v(SC+r),'vcc')
        e('v_cmp_ge_u32','vcc',v(4),v(5)); e('v_cndmask_b32',v(SC+64+r),v(7),v(SC+64+r),'vcc')
    for i in range(16):
        e('s_cmp_ge_u32',s(28),256-16*i); e('s_cbranch_scc1',name+'_ok%d'%i)
        for r in range(4): e('v_mov_b32',v(SC+4*i+r),s(33))
        e.label(name+'_ok%d'%i)
    e('v_max3_f32',v(5),v(SC),v(SC+1),v(SC+2))
    for i in range(3,67,2): e('v_max3_f32',v(5),v(5),v(SC+i),v(SC+i+1))
    e('v_max_f32',v(5),v(5),v(SC+67))
    def xred(op,reg):
        e('v_mov_b32',v(6),v(reg)); e('v_permlane32_swap_b32',v(6),v(reg)); e(op,v(reg),v(reg),v(6))
        e('v_mov_b32',v(6),v(reg)); e('v_permlane16_swap_b32',v(6),v(reg)); e(op,v(reg),v(reg),v(6))
    xred('v_max_f32',5)
    e('s_mov_b32',s(34),'0x3fb8aa3b')
    e('v_mul_f32',v(5),s(34),v(5))
    e('v_mov_b32',v(8),0)
    for i in range(68):
        e('v_fma_f32',v(SC+i),v(SC+i),s(34),'-'+v(5)); e('v_exp_f32',v(SC+i),v(SC+i)); e('v_add_f32',v(8),v(8),v(SC+i))
    xred('v_add_f32',8)
    e('v_rcp_f32',v(8),v(8))
    for i in range(68): e('v_mul_f32',v(SC+i),v(SC+i),v(8))
    for i in range(34): e('v_cvt_pk_bf16_f32',v(SC+i),v(SC+2*i),v(SC+2*i+1))
    e('v_mov_b32',v(SC+34),0); e('v_mov_b32',v(SC+35),0)
    e('s_waitcnt','vmcnt(0)')
    for p in range(9):
        e('v_mfma_f32_16x16x32_bf16',v(12,4),v(VR+4*p,4),v(SC+4*p,4),v(12,4))
    e('s_nop',7)
    e('v_cvt_pk_bf16_f32',v(12),v(12),v(13)); e('v_cvt_pk_bf16_f32',v(13),v(14),v(15))
    e('v_add_u32',v(5),s(28),v(4)); e('v_lshlrev_b32',v(5),10,v(5)); e('v_lshl_add_u32',v(5),v(3),3,v(5))
    e('s_lshl_b32',s(31),s(29),5); e('v_add_u32',v(5),s(31),v(5))
    e('buffer_store_dwordx2',v(12,2),v(5),s(20,4),0,mods='offen')
    e.label(name+'_end'); e('s_endpgm')

def lnt(e,name):
    ST=1792+32
    header(e,name)
    e('s_cmp_ge_u32',s(2),64); e('s_cbranch_scc1',name+'_end')
    e('s_load_dwordx2',s(8,2),s(0,2),KA['ws'])
    e('v_and_b32',v(1),63,v(0)); e('v_lshrrev_b32',v(2),6,v(0)); e('v_readfirstlane_b32',s(30),v(2))
    e('s_lshl_b32',s(28),s(2),5)
    e('s_waitcnt','lgkmcnt(0)')
    srd(e,12,8,9,S*896*2,WS_Z2); srd(e,16,8,9,896*S*2,WS_Z2T)
    e('v_lshrrev_b32',v(3),3,v(0)); e('v_and_b32',v(4),7,v(0))
    e('v_add_u32',v(5),s(28),v(3)); e('s_mov_b32',s(34),1792); e('v_mul_u32_u24',v(5),s(34),v(5)); e('v_lshl_add_u32',v(5),v(4),4,v(5))
    X=32
    for i in range(14): e('buffer_load_dwordx4',v(X+4*i,4),v(5),s(12,4),0,mods='offen offset:%d'%(128*i))
    e('s_mov_b32',s(36),'0x3f803f80')
    for r in (24,25,26,27): e('v_mov_b32',v(r),0)
    e('s_waitcnt','vmcnt(0)')
    for i in range(56):
        e('v_lshlrev_b32',v(28),16,v(X+i)); e('v_and_b32',v(29),'0xffff0000',v(X+i))
        e('v_add_f32',v(24),v(24),v(28)); e('v_add_f32',v(25),v(25),v(29))
        e('v_fma_f32',v(26),v(28),v(28),v(26)); e('v_fma_f32',v(27),v(29),v(29),v(27))
    e('v_add_f32',v(24),v(24),v(25)); e('v_add_f32',v(26),v(26),v(27))
    for md in ('quad_perm:[1,0,3,2]','quad_perm:[2,3,0,1]','row_half_mirror'):
        e('v_add_f32_dpp',v(24),v(24),v(24),mods=md+' row_mask:0xf bank_mask:0xf')
        e('v_add_f32_dpp',v(26),v(26),v(26),mods=md+' row_mask:0xf bank_mask:0xf')
    e('v_mul_f32',v(24),'0x3a924925',v(24)); e('v_mul_f32',v(26),'0x3a924925',v(26))
    e('v_fma_f32',v(26),'-'+v(24),v(24),v(26)); e('v_max_f32',v(26),0,v(26))
    bf16r(e,v(24),v(24)); bf16r(e,v(26),v(26))
    e('v_add_f32',v(26),'0x3727c5ac',v(26)); bf16r(e,v(26),v(26))
    e('v_sqrt_f32',v(26),v(26)); bf16r(e,v(26),v(26)); e('v_rcp_f32',v(26),v(26))
    e('v_mul_f32',v(24),v(24),v(26)); e('v_sub_f32',v(24),0,v(24))
    e('s_mov_b32',s(34),ST); e('v_mul_u32_u24',v(6),s(34),v(3)); e('v_lshl_add_u32',v(6),v(4),4,v(6))
    for i in range(14):
        for d in range(4):
            r=X+4*i+d
            e('v_lshlrev_b32',v(28),16,v(r)); e('v_and_b32',v(29),'0xffff0000',v(r))
            e('v_fma_f32',v(28),v(28),v(26),v(24)); e('v_fma_f32',v(29),v(29),v(26),v(24))
            e('v_cvt_pk_bf16_f32',v(r),v(28),v(29))
        e('ds_write_b128',v(6),v(X+4*i,4),mods='offset:%d'%(128*i))
    e('s_waitcnt','lgkmcnt(0)'); e('s_barrier')
    e('v_lshrrev_b32',v(3),4,v(1)); e('v_and_b32',v(4),15,v(1))
    e('v_lshrrev_b32',v(5),2,v(4)); e('v_lshl_add_u32',v(5),v(3),2,v(5)); e('v_mul_u32_u24',v(5),s(34),v(5))
    e('v_and_b32',v(6),3,v(4)); e('v_lshl_add_u32',v(5),v(6),3,v(5))
    e('s_mul_i32',s(37),s(30),14*32); e('v_add_u32',v(5),s(37),v(5))
    e('s_mul_i32',s(37),s(30),224); e('v_add_u32',v(7),s(37),v(4)); e('v_lshlrev_b32',v(7),12,v(7))
    e('v_lshl_add_u32',v(8),v(3),2,s(28)); e('v_lshl_add_u32',v(7),v(8),1,v(7))
    for j in range(14):
        e('ds_read_b64_tr_b16',v(X+4*j,2),v(5),mods='offset:%d'%(32*j))
        e('ds_read_b64_tr_b16',v(X+4*j+2,2),v(5),mods='offset:%d'%(32*j+16*ST))
    for j in range(14):
        e('s_waitcnt','lgkmcnt(%d)'%min(15,2*(13-j)))
        e('s_mov_b32',s(38),j*16*4096)
        e('buffer_store_dwordx2',v(X+4*j,2),v(7),s(16,4),s(38),mods='offen')
        e('buffer_store_dwordx2',v(X+4*j+2,2),v(7),s(16,4),s(38),mods='offen offset:32')
    e.label(name+'_end'); e('s_endpgm')

def main():
    e=Emitter()
    ks=[('k1_qkv_kernel',256,64*1024+2*64*416,248,lambda n:lngemm(e,n,'qkv')),
        ('k2_attn_kernel',1024,0,168,lambda n:attn(e,n)),
        ('k3_wo_kernel',256,2*(8192+64*160),256,lambda n:gemm2(e,n,'wo')),
        ('k4_win_kernel',256,64*1024+2*64*480,248,lambda n:lngemm(e,n,'win')),
        ('k5_lnt_kernel',64,32*1824,96,lambda n:lnt(e,n)),
        ('k6_wsp_kernel',224,2*(8192+128*128),256,lambda n:gemm2(e,n,'wsp')),
        ('k7_wout_kernel',256,2*(8192+64*160),256,lambda n:gemm2(e,n,'wout'))]
    out=[]
    for n,g,l,nv,f in ks: out.append('; @launch kernel=%s grid=(%d,1,1) block=(%d,1,1) lds=%d'%(n,g,256 if n[1] in '25' else 512,l))
    out.append('.amdgcn_target "amdgcn-amd-amdhsa--gfx950"'); out.append('.text')
    for n,g,l,nv,f in ks: f(n)
    out.append(e.text())
    out.append('.section .rodata,"a"')
    for n,g,l,nv,f in ks:
        out.append('.p2align 6'); out.append(desc(n,nv))
    open(sys.argv[1],'w').write('\n'.join(out))
main()
```
